```python
import torch

def _softmax(x, axis=-1):
    return torch.softmax(x, dim=axis)
def _gelu(x):
    return torch.nn.functional.gelu(x, approximate="tanh")
def _silu(x):
    return torch.nn.functional.silu(x)
def _sigmoid(x):
    return torch.sigmoid(x)
def _layernorm(x, axis=-1, eps=1e-5):
    m = x.mean(dim=axis, keepdim=True)
    v = x.var(dim=axis, keepdim=True, unbiased=False)
    return (x - m) / torch.sqrt(v + eps)
def _scatter_add(tgt, idx, src, axis=0):
    return tgt.clone().index_add_(axis, idx, src)
def _segment_sum(src, seg, n):
    out = torch.zeros((n,) + src.shape[1:], dtype=src.dtype)
    return out.index_add_(0, seg, src)
def _pad(x, pw):
    flat = tuple(v for pair in reversed(pw) for v in pair)
    return torch.nn.functional.pad(x, flat)

kernel_name = 'sequential_preLN__ssm_conv_s4__dense_activation_relu__prompt'

def setup_inputs():

    _w = (lambda a: (lambda t: t.to(torch.bfloat16) if t.is_floating_point() else t)(torch.as_tensor(a)))
    def _A_setup():
        B, L, D, N = 1, 2048, 576, 128
        A_re = -(lambda _x: torch.exp(torch.as_tensor(_x)))((lambda *s: torch.randn(*s, dtype=torch.bfloat16) * 6.4)(D, N))
        A_im = torch.pi * (lambda *s: torch.randn(*s, dtype=torch.bfloat16) * 0.05)(D, N)
        B_re = (lambda *s: torch.randn(*s, dtype=torch.bfloat16) * 0.05)(D, N)
        B_im = (lambda *s: torch.randn(*s, dtype=torch.bfloat16) * 0.05)(D, N)
        C_re = (lambda *s: torch.randn(*s, dtype=torch.bfloat16) * 0.05)(D, N)
        C_im = (lambda *s: torch.randn(*s, dtype=torch.bfloat16) * 0.05)(D, N)
        log_dt = (lambda *s: torch.randn(*s, dtype=torch.bfloat16) * 0.05)(D) * 0.5 - 4.0
        Dskip = (lambda *s: torch.randn(*s, dtype=torch.bfloat16) * 0.05)(D)
        return {
            "u": _w((lambda *s: torch.randn(*s, dtype=torch.bfloat16) * 0.05)(B, L, D)),
            "A_re": _w(A_re),
            "A_im": _w(A_im),
            "B_re": _w(B_re),
            "B_im": _w(B_im),
            "C_re": _w(C_re),
            "C_im": _w(C_im),
            "log_dt": _w(log_dt),
            "Dskip": _w(Dskip),
        }
    _A_in = _A_setup()

    def _B_setup():
        B, S, D, Dff = 1, 2048, 576, 4608
        return {
            "x": _w((lambda *s: torch.randn(*s, dtype=torch.bfloat16) * 0.05)(B, S, D)),
            "w1": _w((lambda *s: torch.randn(*s, dtype=torch.bfloat16) * 0.05)(D, Dff)),
            "w2": _w((lambda *s: torch.randn(*s, dtype=torch.bfloat16) * 0.05)(Dff, D)),
        }
    _B_in = _B_setup()

    return {
        "A_u": _A_in["u"],
        "A_A_re": _A_in["A_re"],
        "A_A_im": _A_in["A_im"],
        "A_B_re": _A_in["B_re"],
        "A_B_im": _A_in["B_im"],
        "A_C_re": _A_in["C_re"],
        "A_C_im": _A_in["C_im"],
        "A_log_dt": _A_in["log_dt"],
        "A_Dskip": _A_in["Dskip"],
        "B_x": _B_in["x"],
        "B_w1": _B_in["w1"],
        "B_w2": _B_in["w2"],
    }

def reference(A_u, A_A_re, A_A_im, A_B_re, A_B_im, A_C_re, A_C_im, A_log_dt, A_Dskip, B_x, B_w1, B_w2):
    def _A_ref(u, A_re, A_im, B_re, B_im, C_re, C_im, log_dt, Dskip):
        Bsz, L, D = u.shape
        dt = torch.exp(log_dt)[:, None]
        A = A_re + 1j * A_im
        Bc = B_re + 1j * B_im
        Cc = C_re + 1j * C_im
        logdA = dt * A
        dB = dt * Bc
        l = (lambda x, dt: x.to(dt))(torch.arange(L), A_re.dtype)
        P = torch.exp(logdA[:, :, None] * l[None, None, :])
        K = torch.einsum("dn,dnl,dn->dl", Cc, P, dB).real
        L2 = 2 * L
        Kp = _pad(K, ((0, 0), (0, L)))
        up = (lambda x, *d: x.permute(*d))(u, 0, 2, 1)
        up = _pad(up, ((0, 0), (0, 0), (0, L)))
        Kf = (lambda x, axes=(-2,-1): torch.fft.rfft2(x.float(), dim=axes))(Kp[:, None, :], axes=(-2, -1))
        Uf = (lambda x, axes=(-2,-1): torch.fft.rfft2(x.float(), dim=axes))(up[:, :, None, :], axes=(-2, -1))
        Yf = Uf * Kf[None, :, :, :]
        y = (lambda x, s, axes=(-2,-1): torch.fft.irfft2(x, s=s, dim=axes).to(torch.bfloat16))(Yf, (1, L2), axes=(-2, -1))[:, :, 0, :L]
        y = (lambda x, *d: x.permute(*d))(y, 0, 2, 1) + u * Dskip[None, None, :]
        return y

    def _B_ref(x, w1, w2):
        h = torch.einsum("bsd,df->bsf", x, w1)
        zero = torch.zeros_like(h)
        h = torch.maximum(h, zero)
        return torch.einsum("bsf,fd->bsd", h, w2)

    x = A_u
    h = x + _A_ref(_layernorm(x, axis=-1), A_A_re, A_A_im, A_B_re, A_B_im, A_C_re, A_C_im, A_log_dt, A_Dskip)
    h2 = h + _B_ref(_layernorm(h, axis=-1), B_w1, B_w2)
    return h2
```

```python
import re

class Asm:
    def __init__(self):
        self.lines = []
    def __call__(self, s=""):
        for ln in s.split("\n"):
            ln = ln.strip()
            if not ln: continue
            self.lines.append(ln if ln.endswith(":") or ln.startswith(".") else "    " + ln)
    def label(self, n): self.lines.append(n + ":")
    def text(self): return "\n".join(self.lines) + "\n"

def v(a, n=1): return f"v{a}" if n == 1 else f"v[{a}:{a+n-1}]"
def a_(a, n=1): return f"a{a}" if n == 1 else f"a[{a}:{a+n-1}]"
def s(a, n=1): return f"s{a}" if n == 1 else f"s[{a}:{a+n-1}]"

def interleave(main, fill, per=2, start=0):
    out = []; n = len(main) - start; k = 0
    for i, m in enumerate(main):
        out.append(m)
        if i >= start:
            want = min(len(fill), -(-(i - start + 1) * len(fill) // n))
            c = 0
            while k < want and c < per:
                out.append(fill[k]); k += 1; c += 1
    out.extend(fill[k:])
    return out

_reg = re.compile(r"\b([vas])(?:(\d+)|\[(\d+):(\d+)\])")
def regs(tok):
    r = set()
    for m in _reg.finditer(tok):
        lo = int(m.group(2) if m.group(2) is not None else m.group(3)); hi = int(m.group(2) if m.group(2) is not None else m.group(4))
        r |= {(m.group(1), i) for i in range(lo, hi + 1)}
    if re.search(r"\bvcc\b", tok): r |= {("s", "vcc")}
    if re.search(r"\bm0\b", tok): r |= {("s", "m0")}
    if re.search(r"\bexec\b", tok): r |= {("s", "exec")}
    return r

TRANS = ("v_exp_f32", "v_log_f32", "v_rcp_f32", "v_rsq_f32", "v_sqrt_f32", "v_sin_f32", "v_cos_f32")
class I:
    def __init__(self, txt):
        self.txt = txt
        t = txt.split(";")[0].strip()
        p = t.split(None, 1); self.op = p[0]
        ops = [x.strip() for x in p[1].split(",")] if len(p) > 1 else []
        fixed = []
        for o in ops:
            if fixed and fixed[-1].count("[") > fixed[-1].count("]"): fixed[-1] += "," + o
            else: fixed.append(o)
        self.ops = fixed; op = self.op
        self.mfma = op.startswith("v_mfma"); self.valu = op.startswith("v_") and not self.mfma
        self.vmem = op.startswith(("buffer_", "global_")); self.ds = op.startswith("ds_"); self.salu = op.startswith("s_")
        self.dpp = "_dpp" in op; self.trans = op.startswith(TRANS); self.lds_dma = self.vmem and re.search(r"\blds\b", t) is not None
        self.w = set(); self.r = set(); self.store_data = set(); self.srcc = set()
        if self.mfma:
            self.w = regs(fixed[0]); self.r = regs(fixed[1]) | regs(fixed[2]); self.srcc = regs(fixed[3]); self.passes = 8 if "32x32" in op else 4
        elif self.valu:
            if op == "v_nop": pass
            else:
                self.w = regs(fixed[0]); self.r = set().union(*[regs(x) for x in fixed[1:]]) if len(fixed) > 1 else set()
                if "_co_" in op: self.w |= regs(fixed[1])
                if op.startswith(("v_fmac", "v_dot2c", "v_writelane")) or self.dpp: self.r |= self.w
                if op.startswith("v_permlane"): self.w |= regs(fixed[1]); self.r |= self.w
                if op.startswith("v_cmpx"): self.w |= {("s", "exec")}
        elif self.vmem:
            allr = set().union(*[regs(x) for x in fixed]) if fixed else set()
            if "load" in op and not self.lds_dma: self.w = regs(fixed[0]); self.r = set().union(*[regs(x) for x in fixed[1:]])
            else:
                self.r = allr
                if "store" in op and ("x3" in op or "x4" in op): self.store_data = regs(fixed[0]) if op.startswith("buffer") else regs(fixed[1])
        elif self.ds:
            if "read" in op or "permute" in op or "swizzle" in op: self.w = regs(fixed[0]); self.r = set().union(*[regs(x) for x in fixed[1:]])
            else: self.r = set().union(*[regs(x) for x in fixed])
        elif self.salu:
            if op.startswith(("s_cmp", "s_waitcnt", "s_nop", "s_barrier", "s_branch", "s_cbranch", "s_endpgm", "s_sleep", "s_setprio")):
                self.r = set().union(*[regs(x) for x in fixed]) if fixed else set()
            else:
                self.w = regs(fixed[0]); self.r = set().union(*[regs(x) for x in fixed[1:]]) if len(fixed) > 1 else set()
        self.states = int(fixed[0], 0) + 1 if op == "s_nop" else 1

def need(p, c):
    n = 0
    vw = {x for x in p.w if x[0] in "va"}; sw = {x for x in p.w if x[0] == "s"}
    if p.valu:
        if c.mfma and vw & (c.r | c.srcc): n = max(n, 2)
        if c.mfma and ("s", "exec") in sw: n = max(n, 4)
        if c.valu and c.dpp and vw & c.r: n = max(n, 2)
        if c.valu and c.dpp and ("s", "exec") in sw: n = max(n, 5)
        if c.op.startswith("v_permlane") and vw & c.r: n = max(n, 2)
        if c.op.startswith(("v_readlane", "v_readfirstlane")) and vw & c.r: n = max(n, 1)
        if p.trans and c.valu and not c.trans and vw & c.r: n = max(n, 1)
        if c.vmem and sw & c.r: n = max(n, 5)
        if c.valu and sw & c.r: n = max(n, 4 if c.op.startswith(("v_readlane", "v_writelane")) else 2)
    if p.mfma:
        big = {4: 8, 8: 12}[p.passes]
        if c.mfma:
            if p.w & c.r: n = max(n, big)
            if p.w & c.srcc and not (p.w == c.srcc and p.passes == c.passes): n = max(n, big - 2)
        elif (c.valu or c.vmem or c.ds) and p.w & (c.r | c.w): n = max(n, big)
        if c.valu and p.srcc & c.w: n = max(n, p.passes - 1)
    if p.store_data and p.store_data & c.w: n = max(n, 2 if c.valu else 1)
    if p.salu and ("s", "m0") in p.w and c.lds_dma: n = max(n, 1)
    return n

def check(text, window=14):
    ins = []; labels = {}
    for ln in text.split("\n"):
        t = ln.split(";")[0].strip()
        if not t or t.startswith("."): continue
        if t.endswith(":"): labels[t[:-1]] = len(ins); continue
        ins.append(I(t))
    succ = []
    for i, x in enumerate(ins):
        sc = []
        if x.op == "s_endpgm": pass
        elif x.op == "s_branch": sc = [labels[x.ops[0]]]
        else:
            if i + 1 < len(ins): sc.append(i + 1)
            if x.op.startswith("s_cbranch"): sc.append(labels[x.ops[0]])
        succ.append(sc)
    bad = []
    for i, p in enumerate(ins):
        if not (p.valu or p.mfma or p.store_data or (p.salu and ("s", "m0") in p.w)): continue
        stack = [(j, 0) for j in succ[i]]; seen = set()
        while stack:
            j, d = stack.pop()
            if j >= len(ins) or d >= window or (j, d) in seen: continue
            seen.add((j, d))
            n = need(p, ins[j])
            if n > d: bad.append(f"need {n} have {d}: [{i}] {p.txt}  ->  [{j}] {ins[j].txt}")
            for k in succ[j]: stack.append((k, d + ins[j].states))
    return bad
```

```python
import sys
from asmx import *

NAME = "sequential_preLN__ssm_conv_s4__dense_activation_relu__prompt"
L, D, N, F = 2048, 576, 128, 4608
KA = dict(x=0, Are=8, Aim=16, Bre=24, Bim=32, Cre=40, Cim=48, ldt=56, Dsk=64, w1=80, w2=88, out=96, dbg=104, ws=112)
WS_W, WS_C1, WS_STATS, WS_FLAG, WS_HT, WS_PART = 0x0, 0xA20000, 0xA28000, 0xA2C000, 0xA40000, 0xC80000
STREAM = 36 * 9216
LOG2E, INV2PI, EPS = 0x3fb8aa3b, 0x3e22f983, 0x3727c5ac
INV576 = 0x3ae38e39

def srd(a, d, base, size, off=None):
    if off is None or off == 0:
        a(f"s_mov_b32 s{d}, s{base}\ns_and_b32 s{d+1}, s{base+1}, 0xffff")
    else:
        a(f"s_add_u32 s{d}, s{base}, {off}\ns_addc_u32 s{d+1}, s{base+1}, 0\ns_and_b32 s{d+1}, s{d+1}, 0xffff")
    a(f"s_mov_b32 s{d+2}, {size}\ns_mov_b32 s{d+3}, 0x20000")

def red16(a, regs_):
    for ctl in ("quad_perm:[1,0,3,2]", "quad_perm:[2,3,0,1]", "row_half_mirror", "row_mirror"):
        a("s_nop 1" if len(regs_) < 2 else "s_nop 0")
        for r in regs_:
            a(f"v_add_f32_dpp v{r}, v{r}, v{r} {ctl} row_mask:0xf bank_mask:0xf")

def swap_add(a, op, r, t):
    a(f"v_mov_b32 v{t}, v{r}\ns_nop 1\n{op} v{r}, v{t}\nv_add_f32 v{r}, v{r}, v{t}")

def ln_round(a, mean, var, t):
    a(f"""v_cvt_pk_bf16_f32 v{mean}, v{mean}, v{var}
    v_and_b32 v{var}, 0xffff0000, v{mean}
    v_add_f32 v{var}, {EPS:#x}, v{var}
    v_cvt_pk_bf16_f32 v{var}, v{var}, v{var}
    v_and_b32 v{var}, 0xffff0000, v{var}
    v_sqrt_f32 v{var}, v{var}
    s_nop 0
    v_cvt_pk_bf16_f32 v{var}, v{var}, v{var}
    v_and_b32 v{var}, 0xffff0000, v{var}""")

def k_stats():
    a = Asm()
    a(f"""s_cmp_ge_u32 s2, 256
    s_cbranch_scc1 L_st_end
    s_load_dwordx2 s[4:5], s[0:1], {KA['x']}
    s_load_dwordx2 s[6:7], s[0:1], {KA['ws']}
    v_lshrrev_b32 v1, 5, v0
    v_and_b32 v2, 31, v0
    v_mul_u32_u24 v3, 1152, v1
    v_mad_u32_u24 v3, v2, 12, v3
    s_mul_i32 s3, s2, 9216
    s_waitcnt lgkmcnt(0)""")
    srd(a, 8, 4, L * D * 2)
    srd(a, 12, 6, 0x14000, WS_STATS)
    for k in range(3):
        a(f"buffer_load_dwordx3 v[{4+4*k}:{6+4*k}], v3, s[8:11], s3 offen offset:{384*k}")
    a("s_waitcnt vmcnt(0)")
    i = 16
    for k in range(3):
        for j in range(3):
            a(f"v_lshlrev_b32 v{i}, 16, v{4+4*k+j}\nv_and_b32 v{i+1}, 0xffff0000, v{4+4*k+j}"); i += 2
    a("v_add_f32 v34, v16, v17\nv_add_f32 v35, v18, v19")
    for j in range(20, 34, 2):
        a(f"v_add_f32 v34, v34, v{j}\nv_add_f32 v35, v35, v{j+1}")
    a("v_add_f32 v34, v34, v35")
    red16(a, [34]); swap_add(a, "v_permlane16_swap_b32", 34, 35)
    a(f"v_mul_f32 v34, {INV576:#x}, v34")
    for j in range(16, 34): a(f"v_sub_f32 v{j}, v{j}, v34")
    a("v_mul_f32 v35, v16, v16\nv_mul_f32 v36, v17, v17")
    for j in range(18, 34, 2):
        a(f"v_fmac_f32 v35, v{j}, v{j}\nv_fmac_f32 v36, v{j+1}, v{j+1}")
    a("v_add_f32 v35, v35, v36")
    red16(a, [35]); swap_add(a, "v_permlane16_swap_b32", 35, 36)
    a(f"v_mul_f32 v35, {INV576:#x}, v35")
    ln_round(a, 34, 35, 36)
    a(f"""v_and_b32 v34, 0xffff, v34
    v_or_b32 v34, v34, v35
    v_mov_b32 v35, 0
    v_lshlrev_b32 v1, 3, v1
    s_lshl_b32 s3, s2, 6
    v_cmp_eq_u32 vcc, 0, v2
    s_and_saveexec_b64 s[16:17], vcc
    buffer_store_dwordx2 v[34:35], v1, s[12:15], s3 offen
    s_mov_b64 exec, s[16:17]
    s_cmp_ge_u32 s2, 4
    s_cbranch_scc1 L_st_end
    v_lshlrev_b32 v1, 2, v0
    s_lshl_b32 s3, s2, 10
    s_add_u32 s3, s3, {WS_FLAG - WS_STATS}
    buffer_store_dword v35, v1, s[12:15], s3 offen
    L_st_end:
    s_endpgm""")
    return a.text(), dict(vgpr=40, agpr=0, grid=256, block=256, lds=0)

REG = 33792
T2O, ROWB = 16896, 528
CPY, UO, XO = 4160, 16640, 21248

def cmul(o, x, m, t):
    return [f"v_pk_mul_f32 v[{t}:{t+1}], v[{x}:{x+1}], v[{m}:{m+1}] op_sel:[0,0] op_sel_hi:[1,0]",
            f"v_pk_fma_f32 v[{o}:{o+1}], v[{x}:{x+1}], v[{m}:{m+1}], v[{t}:{t+1}] op_sel:[1,1,0] op_sel_hi:[0,1,1] neg_lo:[1,0,0]"]

def cmul2(a, o, x, m, t):
    p, q = cmul(o, x, m, t), cmul(o + 2, x + 2, m + 2, t + 2)
    a("\n".join([p[0], q[0], p[1], q[1]]))

def tr_lane_addr(a, dst, lane, t0, t1):
    a(f"""v_lshrrev_b32 v{t0}, 2, v{lane}
    v_lshlrev_b32 v{dst}, 7, v{t0}
    v_and_b32 v{t1}, 3, v{lane}
    v_lshl_add_u32 v{dst}, v{t1}, 3, v{dst}
    v_bfe_u32 v{t1}, v{lane}, 3, 2""")

def dma_lane_off(a, dst, lane, rowbytes, t0, t1):
    a(f"""v_lshrrev_b32 v{t0}, 3, v{lane}
    v_mul_u32_u24 v{dst}, {rowbytes}, v{t0}
    v_bfe_u32 v{t0}, v{lane}, 1, 2
    v_bfe_u32 v{t1}, v{lane}, 4, 2
    v_xor_b32 v{t0}, v{t0}, v{t1}
    v_lshl_add_u32 v{dst}, v{t0}, 5, v{dst}
    v_and_b32 v{t0}, 1, v{lane}
    v_lshl_add_u32 v{dst}, v{t0}, 4, v{dst}""")

def k_conv():
    a = Asm()
    a(f"""s_cmp_ge_u32 s2, 256
    s_cbranch_scc1 L_cv_end
    s_load_dwordx16 s[4:19], s[0:1], 0
    s_load_dwordx2 s[20:21], s[0:1], {KA['Dsk']}
    s_load_dwordx4 s[24:27], s[0:1], {KA['w1']}
    s_load_dwordx2 s[22:23], s[0:1], {KA['ws']}
    v_lshrrev_b32 v1, 6, v0
    v_and_b32 v2, 63, v0
    s_and_b32 s28, s2, 7
    v_readfirstlane_b32 s30, v1
    s_lshr_b32 s29, s2, 3
    s_cmp_ge_u32 s29, 18
    s_cbranch_scc1 L_shuffle""")
    a(f"""s_mul_i32 s31, s28, 72
    s_lshl_b32 s32, s29, 2
    s_add_u32 s31, s31, s32
    s_add_u32 s33, s31, s30
    s_lshl_b32 s34, s33, 8
    s_lshl_b32 s35, s33, 1
    v_lshlrev_b32 v3, 2, v2
    v_add_u32 v3, s34, v3
    v_mov_b32 v4, s35
    s_lshl_b32 s36, s31, 1
    v_mul_u32_u24 v5, 9216, v0
    v_add_u32 v5, s36, v5
    v_lshlrev_b32 v6, 6, v0
    s_waitcnt lgkmcnt(0)""")
    for i in range(6):
        a(f"global_load_dword v{48+i}, v3, s[{6+2*i}:{7+2*i}]")
    a("global_load_ushort v54, v4, s[18:19]\nglobal_load_ushort v55, v4, s[20:21]")
    srd(a, 40, 4, L * D * 2)
    srd(a, 44, 22, 0x4000, WS_STATS)
    srd(a, 48, 22, L * D * 2, WS_HT)
    a("s_movk_i32 s37, 4608")
    for j in range(8):
        a(f"buffer_load_dwordx2 v[{16+2*j}:{17+2*j}], v5, s[40:43], {'0' if j < 4 else 's37'} offen offset:{1152*(j%4)}")
    for j in range(4):
        a(f"buffer_load_dwordx4 v[{32+4*j}:{35+4*j}], v6, s[44:47], 0 offen offset:{16*j}")
    a(f"""s_mul_i32 s38, s30, {REG}
    s_add_u32 s38, s38, 256
    v_lshl_add_u32 v7, v2, 3, s38
    v_and_b32 v8, 31, v2
    v_mul_u32_u24 v8, {ROWB}, v8
    v_lshrrev_b32 v9, 5, v2
    v_lshl_add_u32 v8, v9, 4, v8
    v_add_u32 v8, s38, v8
    s_waitcnt vmcnt(12)""")
    AB, Bq, Cq, DT, Wq, TT = 56, 60, 64, 68, 72, 76
    for dst, re_, im_ in ((AB, 48, 49), (Bq, 50, 51), (Cq, 52, 53)):
        a(f"""v_lshlrev_b32 v{dst}, 16, v{re_}
        v_lshlrev_b32 v{dst+1}, 16, v{im_}
        v_and_b32 v{dst+2}, 0xffff0000, v{re_}
        v_and_b32 v{dst+3}, 0xffff0000, v{im_}""")
    a(f"""v_lshlrev_b32 v{DT}, 16, v54
    v_mul_f32 v{DT}, {LOG2E:#x}, v{DT}
    v_exp_f32 v{DT}, v{DT}
    v_lshlrev_b32 v55, 16, v55
    v_cvt_pk_bf16_f32 v{DT}, v{DT}, v{DT}
    v_and_b32 v{DT}, 0xffff0000, v{DT}""")
    for k in range(4): a(f"v_mul_f32 v{AB+k}, v{DT}, v{AB+k}")
    for k in range(4): a(f"v_mul_f32 v{Bq+k}, v{DT}, v{Bq+k}")
    for k in range(4): a(f"v_mul_f32 v{AB+k}, {(LOG2E, INV2PI)[k&1]:#x}, v{AB+k}")
    cmul2(a, Wq, Cq, Bq, TT)
    Z1, Z8, P1 = 80, 84, 88
    for Z, Lm in ((Z1, None), (Z8, 0x41000000), (P1, 0x43800000)):
        for u in (0, 2):
            if Lm is None:
                a(f"v_exp_f32 v{TT+u}, v{AB+u}\nv_fract_f32 v{TT+u+1}, v{AB+u+1}")
            else:
                a(f"v_mul_f32 v{TT+u}, {Lm:#x}, v{AB+u}\nv_mul_f32 v{TT+u+1}, {Lm:#x}, v{AB+u+1}")
                a(f"v_exp_f32 v{TT+u}, v{TT+u}\nv_fract_f32 v{TT+u+1}, v{TT+u+1}")
        for u in (0, 2):
            a(f"v_cos_f32 v{Z+u}, v{TT+u+1}\nv_sin_f32 v{Z+u+1}, v{TT+u+1}")
        for u in (0, 2):
            a(f"v_mul_f32 v{Z+u}, v{TT+u}, v{Z+u}\nv_mul_f32 v{Z+u+1}, v{TT+u}, v{Z+u+1}")
    cnt = [0]
    def put(src, offs, conj):
        d = 10 + 2 * (cnt[0] % 3); cnt[0] += 1
        n = "-" if conj else ""
        a(f"v_cvt_pk_bf16_f32 v{d}, v{src}, {n}v{src+1}\nv_cvt_pk_bf16_f32 v{d+1}, v{src+2}, {n}v{src+3}")
        for o in offs: a(f"ds_write_b64 v7, v[{d}:{d+1}] offset:{o}")
    for i in range(32):
        put(Wq, [i * ROWB], False)
        if i < 31: cmul2(a, Wq, Wq, Z8, TT)
    def row(hh, r): return T2O + ROWB * ((r & 3) + 8 * (r >> 2) + 4 * hh)
    Y = {1: Z1, 2: 92, 3: 96, 4: 100, 5: 104, 6: 108, 7: 112, 8: Z8}
    a(f"v_mov_b32 v14, 0x3f80\nv_mov_b32 v15, 0x3f80\nds_write_b64 v7, v[14:15] offset:{row(0,0)}")
    cnt[0] = 0
    put(Z1, [row(0, 1)], True)
    for c in range(2, 8):
        cmul2(a, Y[c], Y[c-1], Z1, TT); put(Y[c], [row(0, c)], True)
    TMP, PC = 116, 120
    put(P1, [row(1, 0), row(1, 1)], True)
    for c, rs in ((2, [2]), (4, [3, 4, 5]), (6, [6]), (8, [7])):
        cmul2(a, TMP, P1, Y[c], TT); put(TMP, [row(1, r) for r in rs], True)
    cur = P1
    for m in range(2, 8):
        cmul2(a, PC, cur, P1, TT); cur = PC
        hh = m & 1
        if m < 4:
            put(PC, [row(hh, 8)], True)
            cmul2(a, TMP, PC, Y[4], TT); put(TMP, [row(hh, 9)], True)
            cmul2(a, TMP, PC, Y[8], TT); put(TMP, [row(hh, 10)], True)
        else:
            r0 = 11 if m < 6 else 13
            put(PC, [row(hh, r0)], True)
            cmul2(a, TMP, PC, Y[8], TT); put(TMP, [row(hh, r0 + 1)], True)
    a("s_waitcnt lgkmcnt(0)")
    def rd(ks):
        a(f"ds_read_b128 v[{128+8*ks}:{131+8*ks}], v8 offset:{T2O+32*ks}\nds_read_b128 v[{132+8*ks}:{135+8*ks}], v8 offset:{32*ks}")
    for ks in range(7): rd(ks)
    a(f"""v_sub_u32 v9, 63, v2
    v_lshl_add_u32 v9, v9, 4, s38
    v_and_b32 v10, 15, v2
    v_lshrrev_b32 v11, 4, v2
    v_sub_u32 v12, 3, v10
    v_and_b32 v12, 3, v12
    v_mul_u32_u24 v13, {CPY}, v12
    v_add_u32 v12, v12, v10
    v_sub_u32 v12, {2031 - 256*7}, v12
    v_lshl_add_u32 v12, v11, 3, v12
    v_lshl_add_u32 v12, v12, 1, v13
    v_add_u32 v12, s38, v12
    v_lshlrev_b32 v13, 5, v10
    v_lshl_add_u32 v15, v11, 3, v13
    v_lshl_add_u32 v13, v11, 4, v13
    s_add_u32 s39, s38, {UO + 448}
    v_add_u32 v13, s39, v13
    s_add_u32 s39, s38, {XO}
    v_add_u32 v14, s39, v15""")
    for ks in range(16):
        left = min(ks + 6, 15) - ks
        a(f"s_waitcnt lgkmcnt({2*left})")
        c = "0" if ks == 0 else "v[56:71]"
        a(f"v_mfma_f32_32x32x16_bf16 v[56:71], v[{128+8*ks}:{131+8*ks}], v[{132+8*ks}:{135+8*ks}], {c}")
        if ks + 7 < 16: rd(ks + 7)
    a(f"""v_mov_b32 v72, 0
    v_mov_b32 v73, 0
    v_mov_b32 v74, 0
    v_mov_b32 v75, 0
    v_bfe_u32 v76, v2, 1, 2
    v_mul_u32_u24 v76, {CPY}, v76
    v_and_b32 v77, 1, v2
    v_lshl_add_u32 v76, v77, 4, v76
    v_add_u32 v76, s38, v76
    v_min_u32 v78, 29, v2
    v_lshl_add_u32 v78, v78, 4, s38
    v_cmp_eq_u32 vcc, 0, v2
    v_cmp_eq_u32 s[52:53], 1, v77
    ds_write_b128 v76, v[72:75] offset:4096
    v_cndmask_b32 v55, 0, v55, vcc
    ds_write_b128 v78, v[72:75] offset:{UO}
    s_nop 1
    v_add_f32 v56, v56, v55""")
    Dr = 56
    for sl in range(4):
        E = 80 + 16 * (sl & 1)
        E1, E2, E3 = E + 4, E + 8, E + 12
        if sl == 0: prs = [(7, 6), (5, 4), (3, 2), (1, 0)]
        elif sl == 1: prs = [(10, 10), (9, 9), (9, 8), (8, 8)]
        else:
            x0 = 11 if sl == 2 else 13
            a(f"v_cndmask_b32 v71, v{Dr+x0}, v{Dr+x0+1}, s[52:53]")
            prs = [(x0+1, x0+1), (x0+1, 15), (x0, x0), (x0, x0)]
        n0, n1 = E2 + 3, 79
        if sl == 0: a(f"v_mov_b32 v{n0}, 0\nv_mov_b32 v{n1}, 0")
        else:
            Ep = 80 + 16 * ((sl - 1) & 1)
            a(f"v_mov_b32_dpp v{n0}, v{Ep} wave_ror:1 row_mask:0xf bank_mask:0xf\nv_mov_b32_dpp v{n1}, v{Ep+1} wave_ror:1 row_mask:0xf bank_mask:0xf")
        for k, (lo, hi) in enumerate(prs): a(f"v_cvt_pk_bf16_f32 v{E+k}, v{Dr+lo}, v{Dr+hi}")
        a(f"v_mov_b32_dpp v{n0}, v{E} wave_shr:1 row_mask:0xf bank_mask:0xf\nv_mov_b32_dpp v{n1}, v{E+1} wave_shr:1 row_mask:0xf bank_mask:0xf")
        o = 1024 * (3 - sl)
        a(f"ds_write_b128 v9, v[{E}:{E+3}] offset:{o}")
        seq = [E, E+1, E+2, E+3, n0, n1]
        for k in range(4): a(f"v_alignbit_b32 v{E1+k}, v{seq[k+1]}, v{seq[k]}, 16")
        a(f"ds_write_b128 v9, v[{E1}:{E1+3}] offset:{o+CPY}")
        for k in range(3): a(f"v_mov_b32 v{E2+k}, v{E+1+k}")
        a(f"ds_write_b128 v9, v[{E2}:{E2+3}] offset:{o+2*CPY}")
        for k in range(4): a(f"v_alignbit_b32 v{E3+k}, v{seq[k+2]}, v{seq[k+1]}, 16")
        a(f"ds_write_b128 v9, v[{E3}:{E3+3}] offset:{o+3*CPY}")
    a(f"""s_mov_b32 s54, 0x05040100
    s_mov_b32 s55, 0x07060302
    v_lshlrev_b32 v10, 4, v0
    v_add_u32 v10, 256, v10
    v_add_u32 v11, {2*REG}, v10
    s_barrier
    s_waitcnt vmcnt(4)""")
    for c in range(4):
        for k in range(4):
            a(f"v_perm_b32 v{160+4*c+k}, v{16+2*(2*k+1)+(c>>1)}, v{16+2*(2*k)+(c>>1)}, s{54+(c&1)}")
        a(f"ds_write_b128 v{10+(c>>1)}, v[{160+4*c}:{163+4*c}] offset:{(c&1)*REG+XO}")
    XF = 128
    for j in range(8):
        for h in range(2):
            a(f"v_lshlrev_b32 v{XF+4*j+2*h}, 16, v{16+2*j+h}\nv_and_b32 v{XF+4*j+2*h+1}, 0xffff0000, v{16+2*j+h}")
    a("s_waitcnt vmcnt(0)")
    for j in range(8):
        a(f"v_and_b32 v{33+2*j}, 0xffff0000, v{32+2*j}")
    for j in range(8):
        a(f"v_rcp_f32 v{33+2*j}, v{33+2*j}\nv_lshlrev_b32 v{32+2*j}, 16, v{32+2*j}")
    for j in range(8):
        a(f"v_mul_f32 v{32+2*j}, v{32+2*j}, v{33+2*j}")
    for j in range(8):
        for h in range(2):
            r = XF + 4*j + 2*h
            a(f"v_pk_fma_f32 v[{r}:{r+1}], v[{r}:{r+1}], v[{32+2*j}:{33+2*j}], v[{32+2*j}:{33+2*j}] op_sel:[0,1,0] op_sel_hi:[1,1,0] neg_lo:[0,0,1] neg_hi:[0,0,1]")
    for c in range(4):
        for k in range(4):
            a(f"v_cvt_pk_bf16_f32 v{176+4*c+k}, v{XF+4*(2*k)+c}, v{XF+4*(2*k+1)+c}")
        a(f"ds_write_b128 v{10+(c>>1)}, v[{176+4*c}:{179+4*c}] offset:{(c&1)*REG+UO+480}")
    a("s_waitcnt lgkmcnt(0)\ns_barrier")
    ACC = 96
    def reads(buf, dr):
        A0, B0 = 128 + 64 * buf, 160 + 64 * buf
        t = []
        for k in range(8):
            t.append(f"ds_read_b128 v[{B0+4*k}:{B0+4*k+3}], v13 offset:{512*k + dr}")
            t.append(f"ds_read_b64 v[{A0+4*k}:{A0+4*k+1}], v12 offset:{512*(7-k) + dr}")
            t.append(f"ds_read_b64 v[{A0+4*k+2}:{A0+4*k+3}], v12 offset:{512*(7-k) + 8 + dr}")
        return t
    def mfmas(buf):
        A0, B0 = 128 + 64 * buf, 160 + 64 * buf
        return [f"v_mfma_f32_16x16x32_bf16 v[{ACC+4*(P+j)}:{ACC+4*(P+j)+3}], v[{A0+4*P}:{A0+4*P+3}], v[{B0+4*j}:{B0+4*j+3}], v[{ACC+4*(P+j)}:{ACC+4*(P+j)+3}]"
                for P in range(8) for j in range(8 - P)]
    for i in range(8): a(f"ds_read_b64 v[{16+2*i}:{17+2*i}], v14 offset:{512*i}")
    r0 = reads(0, 0)
    a("\n".join(r0[:6])); a("s_waitcnt lgkmcnt(6)")
    unp = []
    for i in range(8):
        for h in range(2):
            unp += [f"v_lshlrev_b32 v{ACC+4*i+2*h}, 16, v{16+2*i+h}", f"v_and_b32 v{ACC+4*i+2*h+1}, 0xffff0000, v{16+2*i+h}"]
    a("\n".join(interleave(unp, r0[6:], per=1)))
    a("v_subrev_u32 v12, 128, v12\nv_subrev_u32 v13, 128, v13\ns_mov_b32 s39, 4")
    a(".p2align 3\nL_conv:\ns_waitcnt lgkmcnt(0)")
    a("\n".join(interleave(mfmas(0)[:30], reads(1, 64), per=1) + mfmas(0)[30:]))
    a("s_waitcnt lgkmcnt(0)\ns_sub_u32 s39, s39, 1\ns_cmp_eq_u32 s39, 0\ns_cbranch_scc1 L_conv_last")
    a("\n".join(interleave(mfmas(1)[:30], reads(0, 0), per=1) + mfmas(1)[30:33]))
    a("v_subrev_u32 v12, 128, v12\nv_subrev_u32 v13, 128, v13")
    a("\n".join(mfmas(1)[33:]))
    a("s_branch L_conv\nL_conv_last:")
    a("\n".join(mfmas(1)))
    a("s_lshl_b32 s34, s33, 12\ns_nop 7")
    for i in range(8):
        a(f"v_cvt_pk_bf16_f32 v{16+2*i}, v{ACC+4*i}, v{ACC+4*i+1}\nv_cvt_pk_bf16_f32 v{17+2*i}, v{ACC+4*i+2}, v{ACC+4*i+3}")
        a(f"buffer_store_dwordx2 v[{16+2*i}:{17+2*i}], v15, s[48:51], s34 offen offset:{512*i}")
    a("s_endpgm")
    a("L_shuffle:")
    tr_lane_addr(a, 3, 2, 4, 5)
    a(f"""v_lshlrev_b32 v9, 4, v2
    s_mul_i32 s31, s28, {4*STREAM}
    s_waitcnt lgkmcnt(0)""")
    a("s_add_u32 s56, s22, s31\ns_addc_u32 s57, s23, 0")
    srd(a, 44, 56, 4 * STREAM, WS_W)
    a("s_cmp_ge_u32 s29, 27\ns_cbranch_scc1 L_sh2")
    dma_lane_off(a, 6, 2, 9216, 7, 8)
    srd(a, 40, 24, D * F * 2)
    srd(a, 48, 22, F * 4, WS_C1)
    a(f"""s_sub_u32 s29, s29, 18
    s_mul_i32 s32, s28, 9
    s_add_u32 s32, s32, s29
    s_lshl_b32 s33, s32, 7
    s_mul_i32 s34, s30, {8*9216}
    s_add_u32 s33, s33, s34
    s_lshl_b32 s34, s30, 10""")
    for k in range(18):
        a(f"s_mov_b32 m0, s34\ns_add_u32 s34, s34, 4096\nbuffer_load_dwordx4 v6, s[40:43], s33 offen lds\ns_add_u32 s33, s33, {32*9216}")
    a(f"""v_xor_b32 v5, s30, v5
    v_lshl_add_u32 v3, v5, 5, v3
    v_add_u32 v4, {9*4096}, v3
    s_lshl_b32 s35, s29, 2
    s_add_u32 s35, s35, s30
    s_mul_i32 s36, s35, 57
    s_lshr_b32 s36, s36, 9
    s_mul_i32 s37, s36, 9
    s_sub_u32 s37, s35, s37
    s_mul_i32 s36, s36, {STREAM}
    s_lshl_b32 s37, s37, 10
    s_add_u32 s36, s36, s37
    v_mov_b32 v12, 0x3f803f80
    v_mov_b32 v13, 0x3f803f80
    v_mov_b32 v14, 0x3f803f80
    v_mov_b32 v15, 0x3f803f80
    s_waitcnt vmcnt(0)
    s_barrier""")
    for g0 in range(0, 18, 6):
        for ks in range(g0, g0 + 6):
            r = 32 + 4 * ks; b = 3 if ks < 9 else 4; o = (ks % 9) * 4096
            a(f"ds_read_b64_tr_b16 v[{r}:{r+1}], v{b} offset:{o}\nds_read_b64_tr_b16 v[{r+2}:{r+3}], v{b} offset:{o+2048}")
        for ks in range(g0, g0 + 6):
            r = 32 + 4 * ks
            a(f"s_waitcnt lgkmcnt({2*(g0+5-ks)})")
            a(f"buffer_store_dwordx4 v[{r}:{r+3}], v9, s[44:47], s36 offen\ns_add_u32 s36, s36, 9216")
            a(f"v_mfma_f32_16x16x32_bf16 v[16:19], v[{r}:{r+3}], v[12:15], {'0' if ks == 0 else 'v[16:19]'}")
    a(f"""s_lshl_b32 s32, s32, 2
    s_add_u32 s32, s32, s30
    s_lshl_b32 s32, s32, 6
    v_and_b32 v7, 48, v2
    v_and_b32 v8, 15, v2
    v_cmp_eq_u32 vcc, 0, v8
    s_and_saveexec_b64 s[52:53], vcc
    s_nop 3
    buffer_store_dwordx4 v[16:19], v7, s[48:51], s32 offen
    s_endpgm""")
    a("L_sh2:")
    a(f"""s_sub_u32 s29, s29, 27
    s_lshl_b32 s29, s29, 2
    s_add_u32 s29, s29, s30
    s_cmp_ge_u32 s29, 18
    s_cbranch_scc1 L_cv_end""")
    dma_lane_off(a, 6, 2, 1152, 7, 8)
    srd(a, 40, 26, D * F * 2)
    a(f"""s_lshr_b32 s32, s29, 2
    s_mul_i32 s32, s32, 144
    s_and_b32 s33, s29, 3
    s_lshl_b32 s33, s33, 5
    s_add_u32 s32, s32, s33
    s_add_u32 s33, s32, 16
    s_sub_u32 s34, s29, 16
    s_mul_i32 s34, s34, 288
    s_add_u32 s34, s34, 128
    s_add_u32 s35, s34, 144
    s_cmp_ge_u32 s29, 16
    s_cselect_b32 s32, s34, s32
    s_cselect_b32 s33, s35, s33
    s_mul_i32 s34, s28, 576
    s_add_u32 s32, s32, s34
    s_add_u32 s33, s33, s34
    s_mul_i32 s60, s32, 1152
    s_add_u32 s61, s60, {8*1152}
    s_mul_i32 s62, s33, 1152
    s_add_u32 s63, s62, {8*1152}
    s_mul_i32 s34, s30, 36864
    v_add_u32 v3, s34, v3
    s_mov_b32 s39, 9
    L_sh2_ld:""")
    for e in range(4):
        a(f"s_mov_b32 m0, s34\ns_add_u32 s34, s34, 1024\nbuffer_load_dwordx4 v6, s[40:43], s{60+e} offen lds")
    a(f"""v_add_u32 v6, 128, v6
    s_sub_u32 s39, s39, 1
    s_cmp_lg_u32 s39, 0
    s_cbranch_scc1 L_sh2_ld""")
    for tc in range(4):
        a(f"v_xor_b32 v7, {tc}, v5\nv_lshl_add_u32 v{10+tc}, v7, 5, v3")
    a(f"""s_add_u32 s36, s29, 18
    s_mul_i32 s36, s36, 9216
    s_waitcnt vmcnt(0)""")
    for cb in range(9):
        R = 32 + 16 * (cb % 4)
        for tc in range(4):
            r = R + 4 * tc
            a(f"ds_read_b64_tr_b16 v[{r}:{r+1}], v{10+tc} offset:{cb*4096}\nds_read_b64_tr_b16 v[{r+2}:{r+3}], v{10+tc} offset:{cb*4096+2048}")
        for tc in range(4):
            T = 4 * cb + tc; r = R + 4 * tc
            a(f"s_add_u32 s37, s36, {(T//9)*STREAM + (T%9)*1024}\ns_waitcnt lgkmcnt({2*(3-tc)})")
            a(f"buffer_store_dwordx4 v[{r}:{r+3}], v9, s[44:47], s37 offen")
        if cb % 4 == 3: a("s_waitcnt vmcnt(0)")
    a("L_cv_end:\ns_endpgm")
    return a.text(), dict(vgpr=256, agpr=0, grid=256, block=256, lds=147456)

HB, STO = 73728, 151552
def k_ffn():
    a = Asm()
    ACC, BF, C1 = 112, 80, 44
    DEP = 6
    a(f"""s_cmp_ge_u32 s2, 256
    s_cbranch_scc1 L_ff_end
    s_load_dwordx2 s[4:5], s[0:1], {KA['out']}
    s_load_dwordx2 s[6:7], s[0:1], {KA['ws']}
    v_lshrrev_b32 v1, 6, v0
    v_and_b32 v2, 63, v0
    s_and_b32 s28, s2, 7
    v_readfirstlane_b32 s30, v1
    s_lshr_b32 s29, s2, 3""")
    dma_lane_off(a, 6, 2, 4096, 7, 8)
    a(f"""v_lshlrev_b32 v9, 4, v2
    s_lshl_b32 s31, s28, 2
    s_add_u32 s31, s31, s30
    s_mul_i32 s32, s31, {STREAM}
    s_lshl_b32 s33, s29, 7
    s_lshl_b32 s34, s30, 15
    s_add_u32 s33, s33, s34
    s_lshl_b32 s34, s30, 10
    s_waitcnt lgkmcnt(0)""")
    srd(a, 8, 6, L * D * 2, WS_HT)
    srd(a, 12, 6, STREAM, "s32")
    for k in range(18):
        a(f"s_mov_b32 m0, s34\ns_add_u32 s34, s34, 4096\nbuffer_load_dwordx4 v6, s[8:11], s33 offen lds\ns_add_u32 s33, s33, {32*4096}")
    def wloads(stage):
        return [f"buffer_load_dwordx4 a[{stage*36+4*f}:{stage*36+4*f+3}], v9, s[12:15], s{40+f//4} offen offset:{(f%4)*1024}" for f in range(9)]
    adv = ["s_add_u32 s40, s40, 9216", "s_add_u32 s41, s41, 9216", "s_add_u32 s42, s42, 9216"]
    a("s_mov_b32 s40, 0\ns_movk_i32 s41, 4096\ns_movk_i32 s42, 8192")
    for st in range(DEP - 1):
        a("\n".join(wloads(st) + adv))
    srd(a, 16, 6, F * 4, WS_C1)
    a(f"s_mul_i32 s35, s29, {64*9216}\ns_add_u32 s35, s35, {WS_PART}")
    srd(a, 20, 6, 64 * 9216, "s35")
    srd(a, 24, 6, 4096, WS_FLAG)
    srd(a, 44, 4, L * D * 2)
    tr_lane_addr(a, 3, 2, 4, 5)
    for mu in range(4):
        a(f"s_xor_b32 s35, s30, {mu}\nv_xor_b32 v7, s35, v5\nv_lshl_add_u32 v{10+mu}, v7, 5, v3")
    for i in range(144): a(f"v_mov_b32 v{ACC+i}, 0")
    a("v_mov_b32 v14, 0\nv_mov_b32 v15, 0\nv_mov_b32 v16, 0\nv_mov_b32 v17, 0")
    a(f"s_waitcnt vmcnt({9*(DEP-1)})\ns_barrier")
    def xreads(buf, off):
        t = []
        for mu in range(4):
            r = BF + 16 * buf + 4 * mu
            t += [f"ds_read_b64_tr_b16 v[{r}:{r+1}], v{10+mu} offset:{off}", f"ds_read_b64_tr_b16 v[{r+2}:{r+3}], v{10+mu} offset:{off+2048}"]
        return t
    def hreads(buf, off):
        return [f"ds_read_b128 v[{BF+16*buf+4*m}:{BF+16*buf+4*m+3}], v10 offset:{off+1024*m}" for m in range(4)]
    def stats(buf):
        t = []
        for k in range(4):
            r = BF + 16 * buf + k
            t += [f"v_lshlrev_b32 v18, 16, v{r}", f"v_and_b32 v19, 0xffff0000, v{r}",
                  "v_add_f32 v14, v14, v18", "v_add_f32 v15, v15, v19", "v_fmac_f32 v16, v18, v18", "v_fmac_f32 v17, v19, v19"]
        return t
    def step(st, fill):
        buf = st & 1
        ld = wloads((st + DEP - 1) % DEP)
        out = ["s_waitcnt lgkmcnt(0)"]; k = 0
        for f in range(9):
            out.append(f"s_waitcnt vmcnt({9*(DEP-1)-1})")
            ms = range(4) if f % 2 == 0 else range(3, -1, -1)
            for n_, m in enumerate(ms):
                c = ACC + (f * 4 + m) * 4
                out.append(f"v_mfma_f32_16x16x32_bf16 v[{c}:{c+3}], a[{st*36+4*f}:{st*36+4*f+3}], v[{BF+16*buf+4*m}:{BF+16*buf+4*m+3}], v[{c}:{c+3}]")
                room = 2
                if n_ == 0: out.append(ld[f]); room = 1
                if n_ == 3: room = 1
                while room and k < len(fill): out.append(fill[k]); k += 1; room -= 1
        assert k == len(fill), (k, len(fill))
        return out + adv
    a("\n".join(xreads(0, 0)))
    a("s_mov_b32 s39, 3\n.p2align 3\nL_g1:")
    for st in range(DEP):
        a("\n".join(step(st, xreads((st + 1) & 1, (st + 1) * 4096) + stats(st & 1))))
    for mu in range(4): a(f"v_add_u32 v{10+mu}, {DEP*4096}, v{10+mu}")
    a("s_sub_u32 s39, s39, 1\ns_cmp_lg_u32 s39, 0\ns_cbranch_scc1 L_g1")
    a(f"""v_and_b32 v7, 48, v2
    s_mul_i32 s35, s31, 576""")
    for f in range(9): a(f"buffer_load_dwordx4 v[{C1+4*f}:{C1+4*f+3}], v7, s[16:19], s35 offen offset:{64*f}")
    a("v_add_f32 v14, v14, v15\nv_add_f32 v15, v16, v17")
    for op in ("v_permlane16_swap_b32", "v_permlane32_swap_b32"):
        swap_add(a, op, 14, 16); swap_add(a, op, 15, 16)
    a(f"""v_mul_f32 v14, {INV576:#x}, v14
    v_mul_f32 v15, {INV576:#x}, v15
    v_fma_f32 v15, -v14, v14, v15
    v_max_f32 v15, 0, v15""")
    ln_round(a, 14, 15, 16)
    a(f"""v_rcp_f32 v15, v15
    v_lshlrev_b32 v14, 16, v14
    v_and_b32 v7, 15, v2
    v_lshlrev_b32 v7, 2, v7
    v_add_u32 v7, {STO}, v7
    s_lshl_b32 s35, s30, 6
    v_add_u32 v8, s35, v7
    ds_write_b32 v8, v14
    ds_write_b32 v8, v15 offset:256
    s_waitcnt lgkmcnt(0)
    s_barrier""")
    MU, RS = 20, 24
    for mu in range(4):
        a(f"v_xor_b32 v16, {mu*64}, v8\nds_read_b32 v{MU+mu}, v16")
    for m in range(4): a(f"ds_read_b32 v{RS+m}, v7 offset:{256+64*m}")
    a(f"""s_lshl_b32 s35, s30, 14
    s_add_u32 s35, s35, {HB}
    s_lshl_b32 s36, s30, 10
    s_add_u32 s35, s35, s36
    v_add_u32 v16, s35, v9
    s_lshr_b32 s36, s30, 1
    s_add_u32 s36, s36, 16
    s_lshl_b32 s37, s30, 2
    s_sub_u32 s36, s36, s37
    s_lshl_b32 s36, s36, 12
    s_and_b32 s37, s30, 1
    s_lshl_b32 s37, s37, 3
    s_add_u32 s36, s36, s37""")
    for mu in range(4):
        a(f"v_xor_b32 v{28+mu}, {mu*1024}, v16\nv_add_u32 v{32+mu}, s36, v{28+mu}")
    a("s_waitcnt vmcnt(0) lgkmcnt(0)")
    cnt = 0
    def epi1(f, mu, d):
        c = ACC + (f * 4 + mu) * 4; mp = MU + (mu & 2); sel = mu & 1
        for h in range(2):
            a(f"v_pk_fma_f32 v[{c+2*h}:{c+2*h+1}], v[{C1+4*f+2*h}:{C1+4*f+2*h+1}], v[{mp}:{mp+1}], v[{c+2*h}:{c+2*h+1}] op_sel:[0,{sel},0] op_sel_hi:[1,{sel},1] neg_lo:[0,1,0] neg_hi:[0,1,0]")
        for h in range(2): a(f"v_cvt_pk_bf16_f32 v{d+h}, v{c+2*h}, v{c+2*h+1}")
        for h in range(2): a(f"v_pk_max_i16 v{d+h}, v{d+h}, 0")
        for h in range(2): a(f"v_mov_b64 v[{c+2*h}:{c+2*h+1}], 0")
    for q in range(4):
        for mu in range(4):
            d = BF + 4 * (cnt % 8); cnt += 1
            epi1(2 * q, mu, d); epi1(2 * q + 1, mu, d + 2)
            a(f"ds_write_b128 v{28+mu}, v[{d}:{d+3}] offset:{q*4096}")
    for mu in range(4):
        d = BF + 4 * (cnt % 8); cnt += 1
        epi1(8, mu, d)
        a(f"ds_write_b64 v{32+mu}, v[{d}:{d+1}]")
    a(f"v_add_u32 v10, {HB}, v9\ns_waitcnt lgkmcnt(0)\ns_barrier")
    a("\n".join(hreads(0, 0)))
    a("s_mov_b32 s39, 3\n.p2align 3\nL_g2:")
    for st in range(DEP):
        a("\n".join(step(st, hreads((st + 1) & 1, (st + 1) * 4096))))
    a(f"v_add_u32 v10, {DEP*4096}, v10")
    a("s_sub_u32 s39, s39, 1\ns_cmp_lg_u32 s39, 0\ns_cbranch_scc1 L_g2")
    a(f"""v_bfe_u32 v7, v2, 2, 2
    v_mul_u32_u24 v7, {2*8*9216}, v7
    v_lshrrev_b32 v8, 4, v2
    v_lshl_add_u32 v7, v8, 6, v7
    v_and_b32 v8, 3, v2
    v_lshl_add_u32 v7, v8, 4, v7
    s_mul_i32 s35, s28, 9216
    s_mul_i32 s36, s30, 2304
    s_add_u32 s35, s35, s36
    s_add_u32 s36, s35, {8*9216}
    s_waitcnt lgkmcnt(0)""")
    cnt = 0
    for f in range(9):
        for mp in range(2):
            d = BF + 4 * (cnt % 8); cnt += 1
            for e in range(2):
                m = 2 * mp + e; c = ACC + (f * 4 + m) * 4
                for h in range(2):
                    a(f"v_pk_mul_f32 v[{c+2*h}:{c+2*h+1}], v[{c+2*h}:{c+2*h+1}], v[{RS+2*mp}:{RS+2*mp+1}] op_sel:[0,{e}] op_sel_hi:[1,{e}]")
                for h in range(2): a(f"v_cvt_pk_bf16_f32 v{d+2*e+h}, v{c+2*h}, v{c+2*h+1}")
            a(f"buffer_store_dwordx4 v[{d}:{d+3}], v7, s[20:23], s{35+mp} offen offset:{256*f} sc1")
    a(f"""s_waitcnt vmcnt(0)
    s_barrier
    s_cmp_eq_u32 s30, 3
    s_cbranch_scc0 L_ff_rd
    s_lshl_b32 s35, s29, 7
    s_lshl_b32 s36, s28, 2
    s_add_u32 s35, s35, s36
    v_mov_b32 v7, 0
    v_mov_b32 v8, 1
    s_mov_b64 exec, 1
    buffer_store_dword v8, v7, s[24:27], s35 offen sc1
    s_endpgm
    L_ff_rd:""")
    a(f"""v_lshrrev_b32 v7, 4, v2
    v_lshlrev_b32 v7, 4, v7
    v_and_b32 v8, 3, v2
    v_lshl_add_u32 v7, v8, 2, v7
    v_bfe_u32 v11, v2, 2, 2
    v_add_u32 v7, v7, v11
    v_bfe_u32 v11, v7, 1, 2
    s_and_b32 s35, s28, 1
    s_lshl_b32 s35, s35, 1
    v_xor_b32 v11, s35, v11
    v_lshlrev_b32 v7, 7, v7
    s_lshr_b32 s36, s28, 1
    s_lshl_b32 s37, s36, 3
    s_mul_i32 s38, s30, {3*8192}
    s_add_u32 s37, s37, s38
    v_add_u32 v7, s37, v7
    v_lshl_add_u32 v12, v11, 5, v7
    v_xor_b32 v11, 1, v11
    v_lshl_add_u32 v13, v11, 5, v7""")
    for k in range(3):
        a(f"ds_read_b64_tr_b16 v[{44+4*k}:{45+4*k}], v12 offset:{8192*k}\nds_read_b64_tr_b16 v[{46+4*k}:{47+4*k}], v13 offset:{8192*k}")
    a(f"""s_lshl_b32 s37, s29, 6
    s_lshl_b32 s35, s35, 4
    s_add_u32 s37, s37, s35
    s_lshl_b32 s36, s36, 2
    s_add_u32 s37, s37, s36
    s_mul_i32 s37, s37, 1152
    s_mul_i32 s38, s30, 384
    s_add_u32 s37, s37, s38
    s_add_u32 s38, s37, {16*1152}
    v_mul_u32_u24 v14, 1152, v8
    v_lshrrev_b32 v15, 2, v2
    v_lshl_add_u32 v14, v15, 3, v14
    v_and_b32 v15, 7, v2
    v_lshlrev_b32 v15, 2, v15
    s_lshl_b32 s35, s29, 7
    s_mov_b32 s39, 0x40000
    L_poll:
    buffer_load_dword v16, v15, s[24:27], s35 offen sc1
    s_sub_u32 s39, s39, 1
    s_cmp_eq_u32 s39, 0
    s_cbranch_scc1 L_ff_end
    s_waitcnt vmcnt(0)
    v_cmp_eq_u32 vcc, 0, v16
    s_cbranch_vccnz L_poll
    s_mul_i32 s35, s28, {8*9216}
    s_mul_i32 s36, s30, 3072
    s_add_u32 s35, s35, s36""")
    P = 112
    for src in range(8):
        for k in range(3):
            r = P + (src * 3 + k) * 4
            a(f"buffer_load_dwordx4 v[{r}:{r+3}], v9, s[20:23], s35 offen offset:{1024*k} sc1")
        if src < 7: a("s_add_u32 s35, s35, 9216")
    S = 56
    a("s_waitcnt lgkmcnt(0)")
    for k in range(3):
        for j in range(4):
            a(f"v_lshlrev_b32 v{S+8*k+2*j}, 16, v{44+4*k+j}\nv_and_b32 v{S+8*k+2*j+1}, 0xffff0000, v{44+4*k+j}")
    for src in range(8):
        a(f"s_waitcnt vmcnt({3*(7-src)})")
        for k in range(3):
            for j in range(4):
                r = P + (src * 3 + k) * 4 + j
                a(f"v_lshlrev_b32 v16, 16, v{r}\nv_and_b32 v17, 0xffff0000, v{r}\nv_pk_add_f32 v[{S+8*k+2*j}:{S+8*k+2*j+1}], v[{S+8*k+2*j}:{S+8*k+2*j+1}], v[16:17]")
    for k in range(3):
        for j in range(4): a(f"v_cvt_pk_bf16_f32 v{44+4*k+j}, v{S+8*k+2*j}, v{S+8*k+2*j+1}")
        a(f"buffer_store_dwordx2 v[{44+4*k}:{45+4*k}], v14, s[44:47], s37 offen offset:{128*k}")
        a(f"buffer_store_dwordx2 v[{46+4*k}:{47+4*k}], v14, s[44:47], s38 offen offset:{128*k}")
    a("L_ff_end:\ns_endpgm")
    return a.text(), dict(vgpr=256, agpr=216, grid=256, block=256, lds=152064)

def build(kernels):
    head = open(f"cdna_kernels/{NAME}.s.ref").read().split("\n")
    hdr = [l for l in head if l.startswith(";") and "@launch" not in l and "Override" not in l and "grid=ceil" not in l]
    out = "\n".join(hdr) + "\n"
    for n, (t, p) in kernels: out += f"; @launch kernel={n} grid=({p['grid']},1,1) block=({p['block']},1,1) lds={p['lds']}\n"
    out += '.amdgcn_target "amdgcn-amd-amdhsa--gfx950"\n.text\n'
    seen = set()
    for n, (t, p) in kernels:
        if n in seen: continue
        seen.add(n)
        bad = check(t)
        if bad:
            print(f"HAZARDS in {n}:", file=sys.stderr); print("\n".join(bad[:40]), file=sys.stderr); raise SystemExit(1)
        out += f".globl {n}\n.p2align 8\n.type {n},@function\n{n}:\n{t}"
    out += '.section .rodata,"a"\n'
    seen = set()
    for n, (t, p) in kernels:
        if n in seen: continue
        seen.add(n)
        acc = (p['vgpr'] + 3) // 4 * 4
        out += f""".p2align 6
.amdhsa_kernel {n}
  .amdhsa_next_free_vgpr {acc + p['agpr'] if p['agpr'] else p['vgpr']}
  .amdhsa_next_free_sgpr 96
  .amdhsa_accum_offset {acc}
  .amdhsa_group_segment_fixed_size 0
  .amdhsa_kernarg_size 120
  .amdhsa_user_sgpr_count 2
  .amdhsa_user_sgpr_kernarg_segment_ptr 1
  .amdhsa_system_sgpr_workgroup_id_x 1
  .amdhsa_float_denorm_mode_32 3
.end_amdhsa_kernel
"""
    return out

if __name__ == "__main__":
    dst = sys.argv[1] if len(sys.argv) > 1 else f"cdna_kernels/{NAME}.s"
    txt = build([("stats_kernel", k_stats()), ("conv_kernel", k_conv()), ("ffn_kernel", k_ffn())])
    open(dst, "w").write(txt)
    print("wrote", dst, len(txt), "bytes")
```
